```python
import torch

def _softmax(x, axis=-1):
    return torch.softmax(x, dim=axis)
def _gelu(x):
    return torch.nn.functional.gelu(x, approximate="tanh")
def _silu(x):
    return torch.nn.functional.silu(x)
def _sigmoid(x):
    return torch.sigmoid(x)
def _layernorm(x, axis=-1, eps=1e-5):
    m = x.mean(dim=axis, keepdim=True)
    v = x.var(dim=axis, keepdim=True, unbiased=False)
    return (x - m) / torch.sqrt(v + eps)
def _scatter_add(tgt, idx, src, axis=0):
    return tgt.clone().index_add_(axis, idx, src)
def _segment_sum(src, seg, n):
    out = torch.zeros((n,) + src.shape[1:], dtype=src.dtype)
    return out.index_add_(0, seg, src)
def _pad(x, pw):
    flat = tuple(v for pair in reversed(pw) for v in pair)
    return torch.nn.functional.pad(x, flat)

kernel_name = 'standalone__paged_block_table_kv_radixattention__sampling'

def setup_inputs():

    _w = (lambda a: (lambda t: t.to(torch.bfloat16) if t.is_floating_point() else t)(torch.as_tensor(a)))
    B, H, Hkv, Dh = 8, 32, 32, 192
    Lk = 4096
    bs = 16
    nb = max(2, Lk // bs)
    P = max(1, nb // 2)
    n_phys = P + B * (nb - P)
    shared = torch.arange(P, dtype=torch.int64)
    priv = P + torch.arange(B * (nb - P), dtype=torch.int64).reshape(B, nb - P)
    bt = torch.cat([torch.tile(shared[None, :], (B, 1)), priv], dim=1)
    ctx = nb * bs - (torch.arange(1, B + 1, dtype=torch.int64) * 2654435761) % max(1, (nb * bs - P * bs) // 2)
    return {
        "q": _w((lambda *s: torch.randn(*s, dtype=torch.bfloat16) * 0.8)(B, H, Dh)),
        "k_cache": _w((lambda *s: torch.randn(*s, dtype=torch.bfloat16) * 0.8)(n_phys, bs, Hkv, Dh)),
        "v_cache": _w((lambda *s: torch.randn(*s, dtype=torch.bfloat16) * 0.05)(n_phys, bs, Hkv, Dh)),
        "block_table": _w(bt.to(torch.int64)),
        "ctx_lens": _w(torch.as_tensor(ctx).to(torch.int64)),
    }

def reference(q, k_cache, v_cache, block_table, ctx_lens):
    B, H, Dh = q.shape
    n_phys, bs, Hkv, _ = k_cache.shape
    nb = block_table.shape[1]
    Lk = nb * bs
    rep = H // Hkv
    k = k_cache[block_table].reshape(B, Lk, Hkv, Dh)
    v = v_cache[block_table].reshape(B, Lk, Hkv, Dh)
    k = (lambda x, n, axis: torch.repeat_interleave(x, n, dim=axis))(k, rep, axis=2)
    v = (lambda x, n, axis: torch.repeat_interleave(x, n, dim=axis))(v, rep, axis=2)
    scores = torch.einsum("bhd,bkhd->bhk", q, k) * (Dh ** -0.5)
    pos = torch.arange(Lk)
    valid = pos[None, :] < ctx_lens[:, None]
    scores = torch.where(valid[:, None, :], scores, -1e9)
    p = _softmax(scores, axis=-1)
    return torch.einsum("bhk,bkhd->bhd", p, v)
```

```python
import sys, math, struct
from asmlib import *

KVBYTES = 1152*196608
NAME = "standalone__paged_block_table_kv_radixattention__sampling"
SCALE = (192 ** -0.5) * math.log2(math.e)
def f2u(x): return struct.unpack("<I", struct.pack("<f", x))[0]
NEGINF = 0xff800000
MINIT = f2u(-1e30)

class Asm:
    def __init__(s): s.o = []
    def __call__(s, txt):
        for l in txt.strip("\n").split("\n"): s.o.append("    " + l.strip())
    def label(s, l): s.o.append(l + ":")
    def text(s): return "\n".join(s.o) + "\n"

class Regs:
    def __init__(s, start=0): s.n = start
    def get(s, cnt=1, align=1):
        s.n = (s.n + align - 1)//align*align
        r = s.n; s.n += cnt; return r

NR = 64
ML_OFF = 0
PART_OFF = 1 << 17
WS_USED = PART_OFF + 256*64*768

def gen_main(stamps=False, mapx=1):
    e = Asm()
    kn = "attn_part_kernel"
    e.o.append(f".globl {kn}\n.p2align 8\n.type {kn},@function\n{kn}:")
    V = Regs(1)
    vLane = V.get(); vT = V.get(); vT2 = V.get(); vT3 = V.get()
    vKoff = V.get(); vV4 = V.get(); vV2 = V.get()
    vNT = V.get(); vFz = V.get(); vBit = V.get(); vM0 = V.get(); vM1 = V.get()
    vEnt = V.get(); vM = V.get(); vL = V.get(); vLim = V.get(); vF = V.get(); vAl = V.get()
    vMx = V.get(); vMy = V.get()
    vE = V.get(4, 4); vB = V.get(4, 4); vPK = V.get(2, 2)
    vD = V.get(16, 4)
    vA = V.get(12, 4)
    vAcc = V.get(48, 4)
    vVr = V.get(96, 4)
    NV = (V.n + 3)//4*4
    vBt = vVr
    vMask = vVr + 8
    vPos = vVr + 16
    aK = 0
    aQ = 96
    NA = 120
    sQ, sK, sV, sBT, sCTX, sOUT, sDBG, sWS = 4, 6, 8, 10, 12, 14, 16, 18
    rK, rV, rT, rW = 20, 24, 28, 32
    sWave = 36; sHoff = 37; sR = 38; sStart = 39; sCnt = 40; sIdx = 41
    sEnt = 42; sTouched = 43; sSelLo = 44; sSelHi = 45; sScale = 46
    sB0, sB1, sB8, sB9 = 47, 48, 49, 50
    sJ16 = 51; sMsk = 52; sTmp = 53; sNext = 54; sG8 = 55
    sN = 56
    sP = 64
    sT0 = 96
    e(f"""
    s_cmp_ge_u32 s2, 256
    s_cbranch_scc1 L_main_end
    """)
    if stamps: e(f"s_memrealtime s[{sT0}:{sT0+1}]")
    e(f"""
    s_load_dwordx16 s[4:19], s[0:1], 0
    v_and_b32 v{vLane}, 63, v0
    v_lshrrev_b32 v{vT}, 6, v0
    v_and_b32 v{vT2}, 15, v0
    v_readfirstlane_b32 s{sWave}, v{vT}
    v_lshrrev_b32 v{vT3}, 4, v{vLane}                 ; g
    ; vKoff = ((l&15)>>1)*12288 + (l&1)*64 + g*16
    v_lshrrev_b32 v{vKoff}, 1, v{vT2}
    v_mul_u32_u24 v{vKoff}, 12288, v{vKoff}
    v_and_b32 v{vT}, 1, v0
    v_lshl_add_u32 v{vKoff}, v{vT}, 6, v{vKoff}
    v_lshl_add_u32 v{vKoff}, v{vT3}, 4, v{vKoff}
    ; vV4 = 2g*12288 + n*16 ; vV2 = 2g*12288 + 256 + n*8
    v_mul_u32_u24 v{vV4}, 24576, v{vT3}
    v_lshl_add_u32 v{vV2}, v{vT2}, 3, v{vV4}
    v_add_u32 v{vV2}, 256, v{vV2}
    v_lshl_add_u32 v{vV4}, v{vT2}, 4, v{vV4}
    ; q offset (vE) = (l&7)*12288 + ((l>>3)&1)*64 + g*16 ; ctx offset (vE+1) = (l&7)*4 ; bt offset (vE+2) = tid*4
    v_and_b32 v{vT}, 7, v0
    v_mul_u32_u24 v{vE}, 12288, v{vT}
    v_lshlrev_b32 v{vE+1}, 2, v{vT}
    v_lshlrev_b32 v{vBit}, v{vT}, 1
    """.replace(f"v_lshlrev_b32 v{vBit}, v{vT}, 1", f"v_lshlrev_b32_e64 v{vBit}, v{vT}, 1"))
    e(f"""
    v_and_b32 v{vT}, 8, v0
    v_lshl_add_u32 v{vE}, v{vT}, 3, v{vE}
    v_lshl_add_u32 v{vE}, v{vT3}, 4, v{vE}
    v_lshlrev_b32 v{vE+2}, 2, v0
    v_cmp_eq_u32 vcc, 0, v{vT}
    v_lshlrev_b32 v{vE+3}, 4, v0                      ; 16*j
    s_mov_b32 s{sSelLo}, 0x05040100
    v_cndmask_b32_e64 v{vM0}, 0, -1, vcc              ; h==0 lanes
    v_cndmask_b32_e64 v{vM1}, -1, 0, vcc
    s_mov_b32 s{sSelHi}, 0x07060302
    s_mov_b32 s{sScale}, {f2u(SCALE):#x}
    """)
    if mapx == 1:
        e(f"s_and_b32 s{sR}, s2, 63\ns_lshr_b32 s{sG8}, s2, 6")
    else:
        e(f"s_and_b32 s{sG8}, s2, 3\ns_lshr_b32 s{sR}, s2, 2")
    e(f"""
    s_lshl_b32 s{sHoff}, s{sG8}, 2
    s_add_u32 s{sHoff}, s{sHoff}, s{sWave}
    s_mul_i32 s{sHoff}, s{sHoff}, 768
    s_waitcnt lgkmcnt(0)
    s_mov_b32 s{rT}, s{sBT}
    s_and_b32 s{rT+1}, s{sBT+1}, 0xffff
    s_mov_b32 s{rT+2}, 8192
    s_mov_b32 s{rT+3}, 0x20000
    s_mov_b32 s{rW}, s{sCTX}
    s_and_b32 s{rW+1}, s{sCTX+1}, 0xffff
    s_mov_b32 s{rW+2}, 32
    s_mov_b32 s{rW+3}, 0x20000
    buffer_load_dword v{vNT}, v{vE+1}, s[{rW}:{rW+3}], 0 offen
    """)
    for b in range(8):
        if b < 4: e(f"buffer_load_dword v{vBt+b}, v{vE+2}, s[{rT}:{rT+3}], 0 offen offset:{b*1024}")
        else:
            if b == 4: e(f"s_movk_i32 s{sTmp}, 4096")
            e(f"buffer_load_dword v{vBt+b}, v{vE+2}, s[{rT}:{rT+3}], s{sTmp} offen offset:{(b-4)*1024}")
    e(f"""
    s_mov_b32 s{rK}, s{sQ}
    s_and_b32 s{rK+1}, s{sQ+1}, 0xffff
    s_mov_b32 s{rK+2}, {8*12288}
    s_mov_b32 s{rK+3}, 0x20000
    """)
    for h in range(2):
        for i in range(3):
            a = aQ + (h*3+i)*4
            e(f"buffer_load_dwordx4 a[{a}:{a+3}], v{vE}, s[{rK}:{rK+3}], s{sHoff} offen offset:{h*384+i*128}")
    e(f"""
    s_mov_b32 s{rV}, s{sV}
    s_and_b32 s{rV+1}, s{sV+1}, 0xffff
    s_mov_b32 s{rV+2}, {KVBYTES}
    s_mov_b32 s{rV+3}, 0x20000
    """)
    for i in range(48): e(f"v_mov_b32 v{vAcc+i}, 0")
    e(f"v_mov_b32 v{vM}, {MINIT:#x}\nv_mov_b32 v{vL}, 0")
    for b in range(8): e(f"v_mov_b32 v{vMask+b}, 0")
    e(f"s_waitcnt vmcnt(14)")
    e(f"""
    v_cmp_gt_i32 vcc, 1, v{vNT}                       ; ctx <= 0
    v_min_i32 v{vNT}, 4096, v{vNT}
    v_mov_b32 v{vT}, {NEGINF:#x}
    v_mov_b32 v{vT2}, 4096
    v_cndmask_b32_e64 v{vFz}, v{vT}, 0, vcc
    v_cndmask_b32 v{vT2}, v{vNT}, v{vT2}, vcc
    v_cndmask_b32_e64 v{vNT}, v{vNT}, 0, vcc
    v_lshlrev_b32 v{vT3}, 1, v{vT3}                   ; 2g
    v_sub_u32 v{vNT}, v{vNT}, v{vT3}
    """)
    for b in range(8): e(f"v_readlane_b32 s{sN+b}, v{vT2}, {b}")
    e("s_waitcnt vmcnt(6)")
    for b in range(8): e(f"v_cmp_gt_i32 s[{sP+2*b}:{sP+2*b+1}], s{sN+b}, v{vE+3}")
    e(f"v_mov_b32 v{vT}, 1151")
    for b in range(8): e(f"v_min_u32 v{vBt+b}, v{vT}, v{vBt+b}")
    for b in range(8):
        e(f"v_mov_b32 v{vT}, {2048+b}")
        e(f"v_cndmask_b32_e64 v{vBt+b}, v{vT}, v{vBt+b}, s[{sP+2*b}:{sP+2*b+1}]")
    sQp = sP + 16; sJ = sP + 30
    for b in range(7):
        others = list(range(7, b, -1))
        for i, b2 in enumerate(others):
            e(f"v_cmp_eq_u32 s[{sQp+2*i}:{sQp+2*i+1}], v{vBt+b}, v{vBt+b2}")
        e("s_nop 1")
        for i, b2 in enumerate(others):
            e(f"v_addc_co_u32 v{vMask+b}, s[{sJ}:{sJ+1}], v{vMask+b}, v{vMask+b}, s[{sQp+2*i}:{sQp+2*i+1}]")
            e(f"s_andn2_b64 s[{sP+2*b2}:{sP+2*b2+1}], s[{sP+2*b2}:{sP+2*b2+1}], s[{sQp+2*i}:{sQp+2*i+1}]")
    e(f"v_lshlrev_b32 v{vT2}, 16, v0")
    for b in range(8):
        e(f"v_lshl_or_b32 v{vMask+b}, v{vMask+b}, 1, 1")
        e(f"v_lshlrev_b32 v{vMask+b}, {24+b}, v{vMask+b}")
        e(f"v_or3_b32 v{vMask+b}, v{vMask+b}, v{vT2}, v{vBt+b}")
    for b in range(8):
        e(f"s_bcnt1_i32_b64 s{sN+b}, s[{sP+2*b}:{sP+2*b+1}]")
        e(f"v_mbcnt_lo_u32_b32 v{vPos+b}, s{sP+2*b}, 0")
        e(f"v_mbcnt_hi_u32_b32 v{vPos+b}, s{sP+2*b+1}, v{vPos+b}")
    for b in range(8): e(f"v_writelane_b32 v{vT}, s{sN+b}, {b}")
    e(f"""
    v_lshlrev_b32 v{vT2}, 4, v{vLane}
    s_lshl_b32 s{sTmp}, s{sWave}, 2
    v_add_u32 v{vT2}, s{sTmp}, v{vT2}                 ; (b*4+wave)*4
    s_mov_b64 exec, 0xff
    ds_write_b32 v{vT2}, v{vT}
    s_mov_b64 exec, -1
    v_lshlrev_b32 v{vT2}, 2, v{vLane}
    s_waitcnt lgkmcnt(0)
    s_barrier
    ds_read_b32 v{vT}, v{vT2}
    s_waitcnt lgkmcnt(0)
    v_mov_b32 v{vT3}, v{vT}
    s_nop 1
    v_add_u32_dpp v{vT}, v{vT}, v{vT} row_shr:1 row_mask:0xf bank_mask:0xf bound_ctrl:0
    s_nop 1
    v_add_u32_dpp v{vT}, v{vT}, v{vT} row_shr:2 row_mask:0xf bank_mask:0xf bound_ctrl:0
    s_nop 1
    v_add_u32_dpp v{vT}, v{vT}, v{vT} row_shr:4 row_mask:0xf bank_mask:0xf bound_ctrl:0
    s_nop 1
    v_add_u32_dpp v{vT}, v{vT}, v{vT} row_shr:8 row_mask:0xf bank_mask:0xf bound_ctrl:0
    s_nop 1
    v_add_u32_dpp v{vT}, v{vT}, v{vT} row_bcast:15 row_mask:0xa bank_mask:0xf
    s_nop 1
    v_readlane_b32 s{sTmp}, v{vT}, 31                 ; N total
    v_sub_u32 v{vT}, v{vT}, v{vT3}
    s_mul_i32 s{sStart}, s{sTmp}, s{sR}
    s_add_u32 s{sCnt}, s{sStart}, s{sTmp}
    s_lshr_b32 s{sStart}, s{sStart}, 6
    s_lshr_b32 s{sCnt}, s{sCnt}, 6
    s_sub_u32 s{sCnt}, s{sCnt}, s{sStart}
    v_subrev_u32 v{vT}, s{sStart}, v{vT}
    """)
    for b in range(8):
        e(f"s_add_u32 s{sIdx}, s{sWave}, {4*b}")
        e(f"v_readlane_b32 s{sN+b}, v{vT}, s{sIdx}")
    e("s_nop 1")
    for b in range(8):
        e(f"v_add_u32 v{vPos+b}, s{sN+b}, v{vPos+b}")
    for b in range(8):
        e(f"v_cmp_gt_u32 vcc, s{sCnt}, v{vPos+b}")
        e(f"v_lshlrev_b32 v{vPos+b}, 2, v{vPos+b}")
        e(f"s_and_b64 exec, vcc, s[{sP+2*b}:{sP+2*b+1}]")
        e(f"ds_write_b32 v{vPos+b}, v{vMask+b} offset:256")
        e(f"s_mov_b64 exec, -1")
    e(f"""
    s_mov_b32 s{rK}, s{sK}
    s_waitcnt lgkmcnt(0)
    s_barrier
    ds_read_b32 v{vEnt}, v{vT2} offset:256
    s_waitcnt vmcnt(0)
    s_and_b32 s{rK+1}, s{sK+1}, 0xffff
    s_mov_b32 s{rK+2}, {KVBYTES}
    s_mov_b32 s{sTouched}, 0
    s_mov_b32 s{sIdx}, 0
    s_mov_b32 s{sNext}, 0
    s_waitcnt lgkmcnt(0)
    """)
    def setup_next():
        e(f"""
        v_readlane_b32 s{sTmp}, v{vEnt}, s{sNext}
        s_cmp_lt_u32 s{sNext}, s{sCnt}
        s_cselect_b32 s{rK+2}, {KVBYTES}, 0
        s_and_b32 s{sTmp}, s{sTmp}, 0x7ff
        s_min_u32 s{sTmp}, s{sTmp}, 1151
        s_mul_i32 s{sB0}, s{sTmp}, 196608
        s_add_u32 s{sB0}, s{sB0}, s{sHoff}
        s_add_u32 s{sB1}, s{sB0}, 12288
        s_add_u32 s{sB8}, s{sB0}, {8*12288}
        s_add_u32 s{sB9}, s{sB0}, {9*12288}
        s_add_u32 s{sNext}, s{sNext}, 1
        """)
    def load_k(X):
        for tile in range(2):
            for h in range(2):
                for i in range(3):
                    a = aK + X*48 + ((tile*2+h)*3+i)*4
                    e(f"buffer_load_dwordx4 a[{a}:{a+3}], v{vKoff}, s[{rK}:{rK+3}], s{[sB0,sB8][tile]} offen offset:{h*384+i*128} nt")
    def load_v(X):
        e(f"s_mov_b32 s{rV+2}, s{rK+2}")
        for j in range(4):
            so = [sB0, sB1, sB8, sB9][j]
            for h in range(2):
                r = vVr + X*48 + (j*2+h)*6
                e(f"buffer_load_dwordx4 v[{r}:{r+3}], v{vV4}, s[{rV}:{rV+3}], s{so} offen offset:{h*384} nt")
                e(f"buffer_load_dwordx2 v[{r+4}:{r+5}], v{vV2}, s[{rV}:{rV+3}], s{so} offen offset:{h*384} nt")
    for X in range(2):
        setup_next(); load_k(X); load_v(X)
    e(f"s_cmp_eq_u32 s{sCnt}, 0\ns_cbranch_scc1 L_main_fin")
    e.label("L_main_loop")
    for X in range(2):
        e(f"""
        v_readlane_b32 s{sEnt}, v{vEnt}, s{sIdx}
        s_lshr_b32 s{sMsk}, s{sEnt}, 24
        s_bfe_u32 s{sJ16}, s{sEnt}, 0x80010
        s_lshl_b32 s{sJ16}, s{sJ16}, 4
        s_or_b32 s{sTouched}, s{sTouched}, s{sMsk}
        v_and_b32 v{vT}, s{sMsk}, v{vBit}
        v_cmp_ne_u32 vcc, 0, v{vT}
        v_subrev_u32 v{vLim}, s{sJ16}, v{vNT}
        v_mov_b32 v{vT}, {NEGINF:#x}
        v_cndmask_b32 v{vF}, v{vT}, v{vFz}, vcc
        v_cndmask_b32_e64 v{vLim}, 0, v{vLim}, vcc
        """)
        setup_next()
        for r, off in enumerate((0, 1, 8, 9)):
            e(f"v_cmp_lt_i32 s[{sP+2*r}:{sP+2*r+1}], {off}, v{vLim}")
        e("s_waitcnt vmcnt(44)")
        for i in range(3):
            for tile in range(2):
                for h in range(2):
                    a = aK + X*48 + ((tile*2+h)*3+i)*4
                    q = aQ + (h*3+i)*4
                    d = vD + (h*2+tile)*4
                    c = "0" if i == 0 else f"v[{d}:{d+3}]"
                    e(f"v_mfma_f32_16x16x32_bf16 v[{d}:{d+3}], a[{a}:{a+3}], a[{q}:{q+3}], {c}")
        load_k(X)
        for tile in range(2):
            for tt in range(2):
                d0 = vD + (0*2+tile)*4 + 2*tt
                d1 = vD + (1*2+tile)*4 + 2*tt
                ee = vE + tile*2 + tt
                e(f"v_add_f32_dpp v{ee}, v{d0+1}, v{d0} row_ror:8 row_mask:0xf bank_mask:0x3")
                e(f"v_add_f32_dpp v{ee}, v{d1}, v{d1+1} row_ror:8 row_mask:0xf bank_mask:0xc")
        for r in range(4): e(f"v_mul_f32 v{vE+r}, s{sScale}, v{vE+r}")
        for r in range(4): e(f"v_cndmask_b32_e64 v{vE+r}, v{vF}, v{vE+r}, s[{sP+2*r}:{sP+2*r+1}]")
        e(f"""
        v_max3_f32 v{vMx}, v{vE}, v{vE+1}, v{vE+2}
        v_max3_f32 v{vMx}, v{vMx}, v{vE+3}, v{vM}
        v_mov_b32 v{vMy}, v{vMx}
        s_nop 1
        v_permlane16_swap_b32 v{vMx}, v{vMy}
        s_nop 1
        v_max_f32 v{vMx}, v{vMx}, v{vMy}
        v_mov_b32 v{vMy}, v{vMx}
        s_nop 1
        v_permlane32_swap_b32 v{vMx}, v{vMy}
        s_nop 1
        v_max_f32 v{vMx}, v{vMx}, v{vMy}
        v_sub_f32 v{vAl}, v{vM}, v{vMx}
        v_mov_b32 v{vM}, v{vMx}
        v_exp_f32 v{vAl}, v{vAl}
        """)
        for r in range(4): e(f"v_sub_f32 v{vE+r}, v{vE+r}, v{vMx}")
        for r in range(4): e(f"v_exp_f32 v{vE+r}, v{vE+r}")
        e(f"""
        v_mul_f32 v{vL}, v{vL}, v{vAl}
        v_cvt_pk_bf16_f32 v{vPK}, v{vE}, v{vE+1}
        v_cvt_pk_bf16_f32 v{vPK+1}, v{vE+2}, v{vE+3}
        v_add_f32 v{vT}, v{vE}, v{vE+1}
        v_add_f32 v{vT2}, v{vE+2}, v{vE+3}
        v_and_b32 v{vB}, v{vPK}, v{vM0}
        v_and_b32 v{vB+1}, v{vPK+1}, v{vM0}
        v_and_b32 v{vB+2}, v{vPK}, v{vM1}
        v_and_b32 v{vB+3}, v{vPK+1}, v{vM1}
        v_add_f32 v{vT}, v{vT}, v{vT2}
        v_add_f32 v{vL}, v{vL}, v{vT}
        """)
        for i in range(48): e(f"v_mul_f32 v{vAcc+i}, v{vAcc+i}, v{vAl}")
        e("s_waitcnt vmcnt(40)")
        def vr(j, h, c): return vVr + X*48 + (j*2+h)*6 + c
        def perms(ei):
            c = ei >> 1; sel = sSelHi if ei & 1 else sSelLo
            t = vA + (ei % 3)*4
            e(f"v_perm_b32 v{t}, v{vr(1,0,c)}, v{vr(0,0,c)}, s{sel}")
            e(f"v_perm_b32 v{t+1}, v{vr(3,0,c)}, v{vr(2,0,c)}, s{sel}")
            e(f"v_perm_b32 v{t+2}, v{vr(1,1,c)}, v{vr(0,1,c)}, s{sel}")
            e(f"v_perm_b32 v{t+3}, v{vr(3,1,c)}, v{vr(2,1,c)}, s{sel}")
        perms(0)
        for ei in range(12):
            if ei < 11: perms(ei+1)
            else: e("s_nop 1")
            t = vA + (ei % 3)*4; d = vAcc + ei*4
            e(f"v_mfma_f32_16x16x32_bf16 v[{d}:{d+3}], v[{t}:{t+3}], v[{vB}:{vB+3}], v[{d}:{d+3}]")
        load_v(X)
        e(f"""
        s_add_u32 s{sIdx}, s{sIdx}, 1
        s_cmp_ge_u32 s{sIdx}, s{sCnt}
        """)
        if X == 0: e("s_cbranch_scc1 L_main_fin")
        else: e("s_cbranch_scc0 L_main_loop")
    e.label("L_main_fin")
    e(f"""
    v_mov_b32 v{vT}, v{vL}
    s_mov_b32 s{rW}, s{sWS}
    s_and_b32 s{rW+1}, s{sWS+1}, 0xffff
    v_permlane16_swap_b32 v{vL}, v{vT}
    s_mov_b32 s{rW+2}, {WS_USED}
    s_mov_b32 s{rW+3}, 0x20000
    v_add_f32 v{vL}, v{vL}, v{vT}
    v_mov_b32 v{vT}, v{vL}
    s_nop 1
    v_permlane32_swap_b32 v{vL}, v{vT}
    s_nop 1
    v_add_f32 v{vL}, v{vL}, v{vT}
    v_and_b32 v{vT}, 7, v{vLane}
    v_bfe_u32 v{vT2}, v{vLane}, 3, 1
    v_lshl_add_u32 v{vT}, v{vT}, 5, v{vT2}
    s_lshl_b32 s{sTmp}, s{sG8}, 2
    s_add_u32 s{sTmp}, s{sTmp}, s{sWave}
    s_lshl_b32 s{sTmp}, s{sTmp}, 1
    v_add_u32 v{vT}, s{sTmp}, v{vT}
    v_lshlrev_b32 v{vT}, 6, v{vT}
    v_add_u32 v{vT}, s{sR}, v{vT}
    v_lshlrev_b32 v{vT2}, 3, v{vT}
    v_mul_u32_u24 v{vT}, 768, v{vT}
    v_lshrrev_b32 v{vT3}, 4, v{vLane}
    v_lshl_add_u32 v{vT}, v{vT3}, 4, v{vT}
    v_mov_b32 v{vPK}, v{vM}
    v_mov_b32 v{vPK+1}, v{vL}
    s_mov_b64 exec, 0xffff
    buffer_store_dwordx2 v[{vPK}:{vPK+1}], v{vT2}, s[{rW}:{rW+3}], 0 offen
    s_mov_b64 exec, -1
    v_and_b32 v{vT2}, s{sTouched}, v{vBit}
    v_cmp_ne_u32 vcc, 0, v{vT2}
    s_mov_b32 s{sTmp}, {PART_OFF}
    s_and_b64 exec, exec, vcc
    s_cbranch_execz L_main_st
    """)
    for ei in range(12):
        d = vAcc + ei*4
        e(f"buffer_store_dwordx4 v[{d}:{d+3}], v{vT}, s[{rW}:{rW+3}], s{sTmp} offen offset:{ei*64}")
    e.label("L_main_st")
    if stamps:
        e(f"""
        s_mov_b64 exec, -1
        s_waitcnt vmcnt(0)
        s_memrealtime s[{sT0+2}:{sT0+3}]
        s_getreg_b32 s{sTmp}, hwreg(HW_REG_XCC_ID)
        s_add_u32 s{rW}, s{sWS}, {800<<20}
        s_addc_u32 s{rW+1}, s{sWS+1}, 0
        s_and_b32 s{rW+1}, s{rW+1}, 0xffff
        s_waitcnt lgkmcnt(0)
        v_mov_b32 v{vE}, s{sT0}
        v_mov_b32 v{vE+1}, s{sT0+2}
        v_mov_b32 v{vE+2}, s{sTmp}
        v_mov_b32 v{vE+3}, s{sCnt}
        s_lshl_b32 s{sTmp}, s2, 2
        s_add_u32 s{sTmp}, s{sTmp}, s{sWave}
        s_lshl_b32 s{sTmp}, s{sTmp}, 4
        v_mov_b32 v{vT}, 0
        s_mov_b64 exec, 1
        buffer_store_dwordx4 v[{vE}:{vE+3}], v{vT}, s[{rW}:{rW+3}], s{sTmp} offen
        """)
    e.label("L_main_end")
    e("s_endpgm")
    return kn, e.text(), NV + NA, NV

def gen_comb():
    e = Asm()
    kn = "attn_comb_kernel"
    e.o.append(f".globl {kn}\n.p2align 8\n.type {kn},@function\n{kn}:")
    rW, rO = 8, 12
    e(f"""
    s_cmp_ge_u32 s2, 256
    s_cbranch_scc1 L_comb_end
    s_load_dwordx2 s[4:5], s[0:1], 40
    s_load_dwordx2 s[6:7], s[0:1], 56
    v_and_b32 v1, 63, v0
    v_lshrrev_b32 v2, 6, v0
    v_lshlrev_b32 v3, 3, v1
    v_readfirstlane_b32 s3, v2
    s_lshl_b32 s16, s2, 9
    s_mul_i32 s17, s2, {64*768}
    s_add_u32 s17, s17, {PART_OFF}
    s_waitcnt lgkmcnt(0)
    s_mov_b32 s{rW}, s6
    s_and_b32 s{rW+1}, s7, 0xffff
    s_mov_b32 s{rW+2}, {WS_USED}
    s_mov_b32 s{rW+3}, 0x20000
    buffer_load_dwordx2 v[4:5], v3, s[{rW}:{rW+3}], s16 offen
    s_mov_b32 s{rO}, s4
    s_and_b32 s{rO+1}, s5, 0xffff
    s_mov_b32 s{rO+2}, {8*32*192*2}
    s_mov_b32 s{rO+3}, 0x20000
    v_lshlrev_b32 v3, 4, v1                           ; lane*16
    v_mov_b32 v8, 0x80000000
    v_cmp_gt_u32 vcc, 48, v1
    s_nop 1
    v_cndmask_b32 v3, v8, v3, vcc
    s_waitcnt vmcnt(0)
    v_cmp_lt_f32 s[18:19], 0, v5
    s_nop 4
    """)
    e("s_lshr_b64 s[20:21], s[18:19], s3")
    e(f"s_mul_i32 s22, s3, 768")
    for i in range(16):
        e(f"s_bitcmp1_b64 s[20:21], {4*i}")
        e(f"s_cselect_b32 s23, s22, 0x40000000")
        e(f"v_add_u32 v8, s23, v3")
        e(f"buffer_load_dwordx4 v[{16+4*i}:{19+4*i}], v8, s[{rW}:{rW+3}], s17 offen")
        e(f"s_add_u32 s22, s22, {4*768}")
    e(f"""
    v_mov_b32 v6, v4
    s_nop 1
    v_max_f32_dpp v6, v6, v6 row_ror:1 row_mask:0xf bank_mask:0xf
    s_nop 1
    v_max_f32_dpp v6, v6, v6 row_ror:2 row_mask:0xf bank_mask:0xf
    s_nop 1
    v_max_f32_dpp v6, v6, v6 row_ror:4 row_mask:0xf bank_mask:0xf
    s_nop 1
    v_max_f32_dpp v6, v6, v6 row_ror:8 row_mask:0xf bank_mask:0xf
    v_mov_b32 v7, v6
    s_nop 1
    v_permlane16_swap_b32 v6, v7
    s_nop 1
    v_max_f32 v6, v6, v7
    v_mov_b32 v7, v6
    s_nop 1
    v_permlane32_swap_b32 v6, v7
    s_nop 1
    v_max_f32 v6, v6, v7
    v_sub_f32 v4, v4, v6
    v_exp_f32 v4, v4                                  ; w_r
    s_nop 0
    v_cndmask_b32_e64 v4, 0, v4, s[18:19]
    v_mul_f32 v6, v4, v5
    s_nop 1
    v_add_f32_dpp v6, v6, v6 row_ror:1 row_mask:0xf bank_mask:0xf
    s_nop 1
    v_add_f32_dpp v6, v6, v6 row_ror:2 row_mask:0xf bank_mask:0xf
    s_nop 1
    v_add_f32_dpp v6, v6, v6 row_ror:4 row_mask:0xf bank_mask:0xf
    s_nop 1
    v_add_f32_dpp v6, v6, v6 row_ror:8 row_mask:0xf bank_mask:0xf
    v_mov_b32 v7, v6
    s_nop 1
    v_permlane16_swap_b32 v6, v7
    s_nop 1
    v_add_f32 v6, v6, v7
    v_mov_b32 v7, v6
    s_nop 1
    v_permlane32_swap_b32 v6, v7
    s_nop 1
    v_add_f32 v6, v6, v7                              ; L
    v_rcp_f32 v6, v6
    s_nop 0
    v_mul_f32 v4, v4, v6                              ; w_r / L
    v_mov_b32 v12, 0
    v_mov_b32 v13, 0
    v_mov_b32 v14, 0
    v_mov_b32 v15, 0
    """)
    for i in range(16):
        e(f"s_add_u32 s22, s3, {4*i}")
        e(f"v_readlane_b32 s{24+i}, v4, s22")
    for i in range(16):
        e(f"s_waitcnt vmcnt({15-i})")
        for c in range(4):
            e(f"v_fmac_f32 v{12+c}, s{24+i}, v{16+4*i+c}")
    e(f"""
    v_lshrrev_b32 v5, 2, v1                           ; e
    v_and_b32 v6, 3, v1                               ; g
    v_lshl_add_u32 v7, v6, 5, v5                      ; 32g+e
    v_lshl_add_u32 v8, v6, 4, v5
    v_add_u32 v8, 120, v8                             ; 128+16g+e-8
    v_cmp_gt_u32 vcc, 8, v5
    v_mov_b32 v9, 32
    v_mov_b32 v10, 16
    v_cndmask_b32 v7, v8, v7, vcc
    v_cndmask_b32 v9, v10, v9, vcc
    v_lshlrev_b32 v7, 2, v7
    s_mul_i32 s22, s3, 768
    v_add_u32 v7, s22, v7
    s_mov_b32 exec_hi, 0xffff
    ds_write_b32 v7, v12
    v_add_u32 v7, v7, v9
    ds_write_b32 v7, v13
    v_add_u32 v7, v7, v9
    ds_write_b32 v7, v14
    v_add_u32 v7, v7, v9
    ds_write_b32 v7, v15
    s_mov_b64 exec, -1
    s_waitcnt lgkmcnt(0)
    s_barrier
    v_cmp_gt_u32 vcc, 96, v0
    s_and_b64 exec, exec, vcc
    s_cbranch_execz L_comb_end
    v_lshlrev_b32 v7, 3, v0
    ds_read_b64 v[12:13], v7
    ds_read_b64 v[14:15], v7 offset:768
    ds_read_b64 v[16:17], v7 offset:1536
    ds_read_b64 v[18:19], v7 offset:2304
    v_lshlrev_b32 v7, 2, v0
    s_mul_i32 s22, s2, 384
    s_waitcnt lgkmcnt(0)
    v_add_f32 v12, v12, v14
    v_add_f32 v13, v13, v15
    v_add_f32 v16, v16, v18
    v_add_f32 v17, v17, v19
    v_add_f32 v12, v12, v16
    v_add_f32 v13, v13, v17
    v_cvt_pk_bf16_f32 v12, v12, v13
    buffer_store_dword v12, v7, s[{rO}:{rO+3}], s22 offen
    """)
    e.label("L_comb_end")
    e("s_endpgm")
    return kn, e.text(), 80, 80

HEADER = open("cdna_kernels/%s.s.ref" % NAME).read().split("; Override launch")[0]

def build(path, stamps=False, standalone=False, **kw):
    k1, t1, n1, a1 = gen_main(stamps=stamps, **kw)
    k2, t2, n2, a2 = gen_comb()
    src = HEADER
    src += f"; @launch kernel={k1} grid=(256,1,1) block=(256,1,1) lds=1024\n"
    src += f"; @launch kernel={k2} grid=(256,1,1) block=(256,1,1) lds=3072\n"
    src += '.amdgcn_target "amdgcn-amd-amdhsa--gfx950"\n.text\n'
    src += t1 + t2
    src += kd(k1, n1, 102, a1) + kd(k2, n2, 48, a2)
    if standalone:
        src += meta([(k1, n1, 102, 256), (k2, n2, 48, 256)])
    open(path, "w").write(src)

if __name__ == "__main__":
    build("v1.s", stamps=False, standalone=True); assemble("v1.s", "v1.co")
    build("v1s.s", stamps=True, standalone=True); assemble("v1s.s", "v1s.co")
    build("cdna_kernels/%s.s" % NAME)
```
